```python
import torch

def _softmax(x, axis=-1):
    return torch.softmax(x, dim=axis)
def _gelu(x):
    return torch.nn.functional.gelu(x, approximate="tanh")
def _silu(x):
    return torch.nn.functional.silu(x)
def _sigmoid(x):
    return torch.sigmoid(x)
def _layernorm(x, axis=-1, eps=1e-5):
    m = x.mean(dim=axis, keepdim=True)
    v = x.var(dim=axis, keepdim=True, unbiased=False)
    return (x - m) / torch.sqrt(v + eps)
def _scatter_add(tgt, idx, src, axis=0):
    return tgt.clone().index_add_(axis, idx, src)
def _segment_sum(src, seg, n):
    out = torch.zeros((n,) + src.shape[1:], dtype=src.dtype)
    return out.index_add_(0, seg, src)
def _pad(x, pw):
    flat = tuple(v for pair in reversed(pw) for v in pair)
    return torch.nn.functional.pad(x, flat)

kernel_name = 'standalone__grouped__vision'

def setup_inputs():

    _w = (lambda a: (lambda t: t.to(torch.bfloat16) if t.is_floating_point() else t)(torch.as_tensor(a)))
    H = W = 224
    G = 4
    Cg = max(96 // G, 2)
    C = G * Cg
    k = 5
    scale = 1.0 / (k * Cg ** 0.5)
    return {
        "x": _w((lambda *s: torch.randn(*s, dtype=torch.bfloat16) * 0.05)(1, H, W, C)),
        "w": _w((lambda *s: torch.randn(*s, dtype=torch.bfloat16) * 0.05)(k, k, G, Cg, Cg) * scale),
    }

def reference(x, w):
    B, H, W, C = x.shape
    k = w.shape[0]
    G = w.shape[2]
    Cg = C // G
    pad = k // 2
    xp = _pad(x, ((0,0),(pad,pad),(pad,pad),(0,0)))
    xg = xp.reshape(B, H + 2 * pad, W + 2 * pad, G, Cg)
    out = torch.zeros_like(x).reshape(B, H, W, G, Cg)
    for i in range(k):
        for j in range(k):
            out = out + torch.einsum('bhwgc,gcd->bhwgd', xg[:, i:i+H, j:j+W, :, :], w[i, j])
    return out.reshape(B, H, W, C)
```

```python
class Em:
    def __init__(self):
        self.L = []
        self.n = 0
        self.ds_seq = 0
        self.ds_done = 0
        self.ds_dst = {}
        self.vm_seq = 0
        self.vm_done = 0
        self.vm_dst = {}
        self.vm_tag = {}
        self.mfma_w = {}
        self.mfma_c = {}
        self.valu_w = {}
        self.store_r = {}
        self.nmfma = 0
    def raw(self, s):
        self.L.append(s)
    def i(self, s, ws=1):
        self.L.append("  " + s); self.n += ws
    def nop(self, k):
        while k > 0:
            m = min(k, 16)
            self.i(f"s_nop {m-1}", m); k -= m
    def comment(self, s):
        self.L.append("  ; " + s)
    def wait_ds_seq(self, seq):
        if seq > self.ds_done:
            n = self.ds_seq - seq
            assert n >= 0
            if n > 15: n = 15
            self.i(f"s_waitcnt lgkmcnt({n})")
            self.ds_done = self.ds_seq - n
    def wait_ds_all(self):
        self.wait_ds_seq(self.ds_seq)
    def wait_vm_seq(self, seq):
        if seq > self.vm_done:
            n = self.vm_seq - seq
            assert 0 <= n
            if n > 63: n = 63
            self.i(f"s_waitcnt vmcnt({n})")
            self.vm_done = self.vm_seq - n
    def wait_vm(self, tag):
        self.wait_vm_seq(self.vm_tag[tag])
    def _need(self, regs):
        s = max([self.ds_dst.get(r, 0) for r in regs] + [0])
        self.wait_ds_seq(s)
        s = max([self.vm_dst.get(r, 0) for r in regs] + [0])
        self.wait_vm_seq(s)
    def _pad(self, table, regs, dist):
        last = max([table.get(r, -10**9) for r in regs] + [-10**9])
        gap = self.n - last - 1
        if gap < dist:
            self.nop(dist - gap)
    def mfma(self, d, a, b, c):
        R = lambda x: [f"{x[0]}{x[1]+k}" for k in range(4)]
        T = lambda x: f"{x[0]}[{x[1]}:{x[1]+3}]"
        rd = R(a) + R(b) + (R(c) if c else [])
        self._need(rd + R(d))
        self._pad(self.valu_w, rd, 2)
        self._pad(self.mfma_w, R(a) + R(b), 8)
        if c is not None and c != d: self._pad(self.mfma_w, R(c), 6)
        if c is None: self._pad(self.mfma_w, R(d), 8)
        self.i(f"v_mfma_f32_16x16x32_bf16 {T(d)}, {T(a)}, {T(b)}, {T(c) if c else 0}")
        for r in R(d): self.mfma_w[r] = self.n - 1
        if c:
            for r in R(c): self.mfma_c[r] = self.n - 1
        self.nmfma += 1
    def valu(self, s, w=(), r=()):
        self._need(list(w) + list(r))
        self._pad(self.mfma_w, list(w) + list(r), 8)
        self._pad(self.mfma_c, list(w), 3)
        self._pad(self.store_r, list(w), 2)
        self.i(s)
        for x in w: self.valu_w[x] = self.n - 1
    def ds_read(self, s, w, r):
        self._need(list(w) + list(r))
        self._pad(self.mfma_w, list(w) + list(r), 8)
        self._pad(self.store_r, list(w), 1)
        if self.ds_seq - self.ds_done >= 15:
            self.wait_ds_seq(self.ds_seq - 13)
        self.i(s); self.ds_seq += 1
        for x in w: self.ds_dst[x] = self.ds_seq
        return self.ds_seq
    def ds_write(self, s, r):
        self._need(list(r))
        self._pad(self.mfma_w, list(r), 8)
        if self.ds_seq - self.ds_done >= 15:
            self.wait_ds_seq(self.ds_seq - 13)
        self.i(s); self.ds_seq += 1
        return self.ds_seq
    def vmem(self, s, w=(), r=(), tag=None, store=False):
        self._need(list(w) + list(r))
        self._pad(self.mfma_w, list(w) + list(r), 8)
        self.i(s); self.vm_seq += 1
        for x in w: self.vm_dst[x] = self.vm_seq
        if store:
            for x in r: self.store_r[x] = self.n - 1
        if tag is not None: self.vm_tag[tag] = self.vm_seq
        return self.vm_seq
    def text(self):
        return "\n".join(self.L) + "\n"
def regs(kind, base, n):
    return [f"{kind}{base+k}" for k in range(n)]
```

```python
import sys, json
from asmlib import Em, regs
cfg = dict(out="k1.s", stamps=0, st_pol="", order="inter", name="standalone__grouped__vision", pol_w="", pol_r="", align=0)
for a in sys.argv[1:]:
    k, v = a.split("=")
    cfg[k] = type(cfg[k])(v)
NAME = cfg["name"] + "_kernel"
R = 14; NROW = R + 4; NP = R // 2
WB = 46080; ZB = 161280; KROW = 23040; TAP = 4608
SB = 69120; SROW = 3328; SPAIR = 6656; SPX = 208
XBYTES = 9633792
e = Em()
hdr = open("standalone__grouped__vision.s.ref").read().split("\n")
for l in hdr:
    if l.startswith("; @launch"): break
    e.raw(l)
e.raw("; @launch grid=(224,1,1) block=(256,1,1) lds=163840")
e.raw('.amdgcn_target "amdgcn-amd-amdhsa--gfx950"')
e.raw(".text")
e.raw(f".globl {NAME}")
if cfg["align"]:
    e.raw(".p2align 12")
    e.raw(f".fill {cfg['align']//4}, 4, 0xbf800000")
e.raw(".p2align 8")
e.raw(f".type {NAME},@function")
e.raw(f"{NAME}:")
nst = [0]; labels = []
def stamp(lbl):
    if cfg["stamps"]:
        e.i(f"s_memtime s[{40+2*nst[0]}:{41+2*nst[0]}]"); nst[0] += 1; labels.append(lbl)
I = e.i
vnext = [1]
def valloc(n=1, al=1):
    b = (vnext[0] + al - 1) // al * al
    vnext[0] = b + n
    return b
vT = [valloc() for _ in range(8)]
vRowOff = valloc(); vW16 = valloc()
aM = [valloc() for _ in range(3)]; aF = [valloc() for _ in range(3)]; aR = valloc()
aA, aA2, aB0, aB1, aB4, aB5, aF0, aBF, aR0, aR4, aBR4, aBR5 = [valloc() for _ in range(12)]
aSA, aSB, aSR, vOutOff = [valloc() for _ in range(4)]
accA = [valloc(4, 4) for _ in range(R)]
accB = [valloc(4, 4) for _ in range(NP)]
fM = [[valloc(4, 4) for _ in range(3)] for _ in range(2)]
fR = [valloc(4, 4) for _ in range(2)]
fF = [valloc(4, 4) for _ in range(3)]
vPk = valloc(6, 2)
vSt = [valloc(4, 4) for _ in range(2)]
NV = vnext[0]
assert NV <= 256
wnext = [0]
def walloc():
    b = wnext[0]; wnext[0] += 4; return b
WA = {(i, c): walloc() for i in range(5) for c in range(3)}
WBm = {(t, c): walloc() for t in range(6) for c in range(3)}
WAF0 = [walloc() for _ in range(3)]; WAF1 = [walloc() for _ in range(3)]; WBF = [walloc() for _ in range(3)]
WAR0 = walloc(); WAR4 = walloc(); WBR4 = walloc(); WBR5 = walloc()
NA = wnext[0]
if cfg["stamps"]: I("s_memrealtime s[36:37]")
stamp("t0")
I("s_load_dwordx4 s[4:7], s[0:1], 0")
I("s_load_dwordx2 s[16:17], s[0:1], 16")
if cfg["stamps"]: I("s_load_dwordx2 s[32:33], s[0:1], 32")
I("s_cmp_ge_u32 s2, 224")
I("s_cbranch_scc1 L_end")
I("s_and_b32 s20, s2, 7")
I("s_lshr_b32 s21, s2, 3")
I("s_cmp_ge_u32 s21, 14")
I("s_cselect_b32 s22, 14, 0")
I("s_sub_u32 s21, s21, s22")
I("s_mul_i32 s20, s20, 28")
I("s_add_u32 s20, s20, s22")
I("s_lshl_b32 s21, s21, 4")
t0, t1, t2, t3, t4, t5, t6, t7 = vT
V = e.valu
V(f"v_lshrrev_b32 v{t0}, 6, v0", w=[f"v{t0}"])
V(f"v_mul_u32_u24 v{t1}, 5462, v0", w=[f"v{t1}"])
V(f"v_readfirstlane_b32 s23, v{t0}")
V(f"v_lshrrev_b32 v{t1}, 16, v{t1}", w=[f"v{t1}"])
V(f"v_mul_u32_u24 v{t2}, 12, v{t1}", w=[f"v{t2}"])
V(f"v_sub_u32 v{t2}, v0, v{t2}", w=[f"v{t2}"])
V(f"v_bfe_u32 v{t3}, v{t1}, 2, 2", w=[f"v{t3}"])
V(f"v_xor_b32 v{t2}, v{t2}, v{t3}", w=[f"v{t2}"])
I("s_sub_u32 s24, s21, 2")
V(f"v_add_u32 v{t1}, s24, v{t1}", w=[f"v{t1}"])
V(f"v_mul_u32_u24 v{t3}, 192, v{t1}", w=[f"v{t3}"])
V(f"v_lshl_add_u32 v{t3}, v{t2}, 4, v{t3}", w=[f"v{t3}"])
V(f"v_cmp_gt_u32 vcc, 224, v{t1}")
V(f"v_bfrev_b32 v{t4}, 1", w=[f"v{t4}"])
V(f"v_and_b32 v{t5}, 63, v0", w=[f"v{t5}"])
V(f"v_cndmask_b32 v{vRowOff}, v{t4}, v{t3}, vcc", w=[f"v{vRowOff}"])
V(f"v_lshlrev_b32 v{vW16}, 4, v{t5}", w=[f"v{vW16}"])
I("s_cmp_eq_u32 s23, 3")
I("s_mov_b32 s26, -1")
I("s_cselect_b32 s27, 0xffff, -1")
I("s_lshl_b32 s25, s23, 10")
I("s_sub_u32 s28, s20, 2")
I("s_mul_i32 s29, s28, 43008")
I("s_mov_b32 s11, 0x20000")
I("s_mov_b32 s14, 161280")
I("s_mov_b32 s15, 0x20000")
I("s_mov_b32 s18, 9633792")
I("s_mov_b32 s19, 0x20000")
I("s_waitcnt lgkmcnt(0)")
stamp("karg")
I("s_mov_b32 s8, s4")
I("s_mov_b32 s9, s5")
I(f"s_sub_u32 s12, s6, {WB}")
I("s_subb_u32 s13, s7, 0")
cur = ["w"]
def ld_w(k):
    if cur[0] != "w": I("s_mov_b64 exec, -1"); cur[0] = "w"
    I(f"s_add_u32 m0, s25, {WB+4096*k}")
    I("s_nop 0")
    e.vmem(f"buffer_load_dwordx4 v{vW16}, s[12:15], m0 offen {cfg['pol_w']} lds", tag=("w", k))
def ld_r(y):
    if cur[0] != "r": I("s_mov_b64 exec, s[26:27]"); cur[0] = "r"
    I(f"s_add_u32 s30, s28, {y}")
    I(f"s_cmp_lt_u32 s30, 224")
    I(f"s_cselect_b32 s10, s18, 0")
    I(f"s_add_u32 m0, s25, {3840*y}")
    I(f"s_add_u32 s31, s29, {43008*y}")
    e.vmem(f"buffer_load_dwordx4 v{vRowOff}, s[8:11], s31 offen {cfg['pol_r']} lds", tag=("r", y))
def exec_all():
    if cur[0] != "w": I("s_mov_b64 exec, -1"); cur[0] = "w"
wk = [list(range(0,6)), list(range(6,12)), list(range(12,17)), list(range(17,23)), list(range(23,28))]
order = [("w", 28)]
if cfg["order"] == "inter":
    for i in range(5): order += [("w", k) for k in wk[i]] + [("r", i)]
    order += [("r", y) for y in range(5, 12)]
elif cfg["order"] == "r_first":
    order += [("r", y) for y in range(0, 4)] + [("w", k) for k in range(28)] + [("r", y) for y in range(4, 12)]
for kind, k in order:
    (ld_w if kind == "w" else ld_r)(k)
exec_all()
stamp("issued")
lane = t5
V(f"v_lshrrev_b32 v{t0}, 4, v{lane}", w=[f"v{t0}"])
V(f"v_and_b32 v{t1}, 15, v{lane}", w=[f"v{t1}"])
I("s_mul_i32 s30, s23, 3")
V(f"v_add_u32 v{t2}, v{t0}, v{t1}", w=[f"v{t2}"])
V(f"v_bfe_u32 v{t3}, v{t2}, 2, 2", w=[f"v{t3}"])
V(f"v_mul_u32_u24 v{t2}, 192, v{t2}", w=[f"v{t2}"])
for c in range(3):
    I(f"s_add_u32 s31, s30, {c}")
    V(f"v_xor_b32 v{t4}, s31, v{t3}", w=[f"v{t4}"])
    V(f"v_lshl_add_u32 v{aM[c]}, v{t4}, 4, v{t2}", w=[f"v{aM[c]}"])
V(f"v_add_u32 v{t2}, 4, v{t1}", w=[f"v{t2}"])
V(f"v_bfe_u32 v{t3}, v{t2}, 2, 2", w=[f"v{t3}"])
V(f"v_mul_u32_u24 v{t2}, 192, v{t2}", w=[f"v{t2}"])
V(f"v_min_u32 v{t4}, 2, v{t0}", w=[f"v{t4}"])
V(f"v_add_u32 v{t4}, s30, v{t4}", w=[f"v{t4}"])
V(f"v_xor_b32 v{t4}, v{t4}, v{t3}", w=[f"v{t4}"])
V(f"v_lshl_add_u32 v{aR}, v{t4}, 4, v{t2}", w=[f"v{aR}"])
V(f"v_mul_u32_u24 v{t4}, 3840, v{t0}", w=[f"v{t4}"])
V(f"v_add_u32 v{t2}, v{t2}, v{t4}", w=[f"v{t2}"])
for c in range(3):
    I(f"s_add_u32 s31, s30, {c}")
    V(f"v_xor_b32 v{t4}, s31, v{t3}", w=[f"v{t4}"])
    V(f"v_lshl_add_u32 v{aF[c]}, v{t4}, 4, v{t2}", w=[f"v{aF[c]}"])
I("s_mul_i32 s31, s23, 48")
I(f"s_add_u32 s31, s31, {SB}")
V(f"v_mul_u32_u24 v{t2}, {SPX}, v{t1}", w=[f"v{t2}"])
V(f"v_add_u32 v{t2}, s31, v{t2}", w=[f"v{t2}"])
V(f"v_lshl_add_u32 v{aSA}, v{t0}, 3, v{t2}", w=[f"v{aSA}"])
V(f"v_lshrrev_b32 v{t3}, 1, v{t0}", w=[f"v{t3}"])
V(f"v_mul_u32_u24 v{t3}, {SROW}, v{t3}", w=[f"v{t3}"])
V(f"v_and_b32 v{t4}, 1, v{t0}", w=[f"v{t4}"])
V(f"v_lshl_add_u32 v{t3}, v{t4}, 3, v{t3}", w=[f"v{t3}"])
V(f"v_add3_u32 v{aSB}, v{t2}, v{t3}, 32", w=[f"v{aSB}"])
V(f"v_mul_u32_u24 v{t2}, 5462, v{lane}", w=[f"v{t2}"])
V(f"v_lshrrev_b32 v{t2}, 16, v{t2}", w=[f"v{t2}"])
I(f"s_mul_i32 s31, s23, {4*SPX}")
I(f"s_add_u32 s31, s31, {SB}")
V(f"v_lshlrev_b32 v{t2}, 4, v{t2}", w=[f"v{t2}"])
V(f"v_add3_u32 v{aSR}, v{t2}, v{vW16}, s31", w=[f"v{aSR}"])
I("s_lshl_b32 s31, s23, 2")
I("s_add_u32 s31, s31, s21")
I("s_mul_i32 s31, s31, 192")
V(f"v_add_u32 v{t2}, s31, v{vW16}", w=[f"v{t2}"])
V(f"v_cmp_gt_u32 vcc, 48, v{lane}")
V(f"v_bfrev_b32 v{t4}, 1", w=[f"v{t4}"])
I("s_mul_i32 s24, s20, 43008")
V(f"v_cndmask_b32 v{vOutOff}, v{t4}, v{t2}, vcc", w=[f"v{vOutOff}"])
V(f"v_bfe_u32 v{t2}, v{lane}, 2, 2", w=[f"v{t2}"])
V(f"v_and_b32 v{t3}, 3, v{lane}", w=[f"v{t3}"])
I("s_mul_i32 s31, s23, 1152")
I(f"s_add_u32 s31, s31, {WB}")
V(f"v_mul_u32_u24 v{t2}, 48, v{t2}", w=[f"v{t2}"])
V(f"v_add_u32 v{t2}, s31, v{t2}", w=[f"v{t2}"])
V(f"v_lshl_add_u32 v{t6}, v{t3}, 3, v{t2}", w=[f"v{t6}"])
V(f"v_and_b32 v{t4}, 1, v{t3}", w=[f"v{t4}"])
V(f"v_lshl_add_u32 v{t7}, v{t4}, 3, v{t2}", w=[f"v{t7}"])
V(f"v_lshrrev_b32 v{t4}, 1, v{t3}", w=[f"v{t4}"])
V(f"v_mul_u32_u24 v{t4}, {KROW}, v{t4}", w=[f"v{t4}"])
V(f"v_sub_u32 v{t7}, v{t7}, v{t4}", w=[f"v{t7}"])
V(f"v_add_u32 v{t7}, 32, v{t7}", w=[f"v{t7}"])
V(f"v_cmp_le_u32 s[34:35], 2, v{t3}")
V(f"v_cmp_eq_u32 s[38:39], 3, v{t0}")
V(f"v_mov_b32 v{t1}, {ZB}", w=[f"v{t1}"])
V(f"v_mul_u32_u24 v{t2}, {TAP}, v{t0}", w=[f"v{t2}"])
V(f"v_add_u32 v{aA}, v{t6}, v{t2}", w=[f"v{aA}"])
V(f"v_add_u32 v{aA2}, {3*KROW}, v{aA}", w=[f"v{aA2}"])
V(f"v_add_u32 v{t3}, v{t7}, v{t2}", w=[f"v{t3}"])
V(f"v_add_u32 v{aB1}, {KROW}, v{t3}", w=[f"v{aB1}"])
V(f"v_add_u32 v{aB4}, {4*KROW}, v{t3}", w=[f"v{aB4}"])
V(f"v_cndmask_b32 v{aB0}, v{t3}, v{t1}, s[34:35]", w=[f"v{aB0}"])
V(f"v_add_u32 v{t3}, {5*KROW}, v{t3}", w=[f"v{t3}"])
V(f"v_cndmask_b32 v{aB5}, v{t1}, v{t3}, s[34:35]", w=[f"v{aB5}"])
V(f"v_mul_u32_u24 v{t2}, {KROW}, v{t0}", w=[f"v{t2}"])
V(f"v_add_u32 v{t2}, {4*TAP}, v{t2}", w=[f"v{t2}"])
V(f"v_add_u32 v{aF0}, v{t6}, v{t2}", w=[f"v{aF0}"])
V(f"v_add_u32 v{t3}, v{t7}, v{t2}", w=[f"v{t3}"])
V(f"v_cmp_eq_u32 vcc, 0, v{t0}")
I("s_and_b64 vcc, vcc, s[34:35]")
I("s_nop 1")
V(f"v_cndmask_b32 v{aBF}, v{t3}, v{t1}, vcc", w=[f"v{aBF}"])
V(f"v_mul_u32_u24 v{t2}, 384, v{t0}", w=[f"v{t2}"])
V(f"v_add_u32 v{t2}, {4*TAP}, v{t2}", w=[f"v{t2}"])
V(f"v_add_u32 v{t3}, v{t6}, v{t2}", w=[f"v{t3}"])
V(f"v_cndmask_b32 v{aR0}, v{t3}, v{t1}, s[38:39]", w=[f"v{aR0}"])
V(f"v_add_u32 v{t3}, {4*KROW}, v{t3}", w=[f"v{t3}"])
V(f"v_cndmask_b32 v{aR4}, v{t3}, v{t1}, s[38:39]", w=[f"v{aR4}"])
V(f"v_add_u32 v{t3}, v{t7}, v{t2}", w=[f"v{t3}"])
V(f"v_add_u32 v{t3}, {4*KROW}, v{t3}", w=[f"v{t3}"])
V(f"v_cndmask_b32 v{aBR4}, v{t3}, v{t1}, s[38:39]", w=[f"v{aBR4}"])
V(f"v_add_u32 v{t3}, {KROW}, v{t3}", w=[f"v{t3}"])
I("s_andn2_b64 vcc, s[34:35], s[38:39]")
I("s_nop 1")
V(f"v_cndmask_b32 v{aBR5}, v{t1}, v{t3}, vcc", w=[f"v{aBR5}"])
stamp("setup")
def trread(dst, addr, imm):
    for h in range(2):
        e.ds_read(f"ds_read_b64_tr_b16 a[{dst+2*h}:{dst+2*h+1}], v{addr} offset:{imm+192*h}", w=regs("a", dst+2*h, 2), r=[f"v{addr}"])
def rd_frag(dst, addr, imm):
    e.ds_read(f"ds_read_b128 v[{dst}:{dst+3}], v{addr} offset:{imm}", w=regs("v", dst, 4), r=[f"v{addr}"])
def row_reads(y):
    out = []
    if y >= NROW: return out
    for c in range(3): out.append(lambda c=c: rd_frag(fM[y & 1][c], aM[c], 3840 * y))
    if r_items(y): out.append(lambda: rd_frag(fR[y & 1], aR, 3840 * y))
    if y & 1 and y >= 3:
        for c in range(3): out.append(lambda c=c: rd_frag(fF[c], aF[c], 3840 * (y - 3)))
    return out
def r_items(y):
    it = []
    if y % 2 == 0:
        if 0 <= y - 4 < R: it += [(("A", y - 4), WAR4), (("B", (y - 4) // 2), WBR4)]
    else:
        if y < R: it.append((("A", y), WAR0))
        if y >= 5: it.append((("B", (y - 5) // 2), WBR5))
    return it
started = set()
def acc(t): return accA[t[1]] if t[0] == "A" else accB[t[1]]
def mm(t, w, f):
    d = ("v", acc(t))
    e.mfma(d, ("a", w), ("v", f), d if t in started else None)
    started.add(t)
def row_mfmas(y):
    out = []
    for c in range(3):
        for r in range(max(0, y - 4), min(R - 1, y) + 1):
            out.append((("A", r), WA[(y - r, c)], fM[y & 1][c]))
        for p in range(NP):
            if 2 * p <= y <= 2 * p + 5: out.append((("B", p), WBm[(y - 2 * p, c)], fM[y & 1][c]))
    for t, w in r_items(y): out.append((t, w, fR[y & 1]))
    if y & 1 and y >= 3:
        for c in range(3):
            if y - 3 < R: out.append((("A", y - 3), WAF0[c], fF[c]))
            if 0 <= y - 4 < R: out.append((("A", y - 4), WAF1[c], fF[c]))
            if (y - 3) // 2 < NP: out.append((("B", (y - 3) // 2), WBF[c], fF[c]))
    return out
def epi_write(p):
    out = []
    srcs = [(accA[2 * p], aSA, p * SPAIR), (accA[2 * p + 1], aSA, p * SPAIR + SROW), (accB[p], aSB, p * SPAIR)]
    for k, (a, ad, imm) in enumerate(srcs):
        d = vPk + 2 * k
        out.append(lambda a=a, d=d: e.valu(f"v_cvt_pk_bf16_f32 v{d}, v{a}, v{a+1}", w=[f"v{d}"], r=regs("v", a, 2)))
        out.append(lambda a=a, d=d: e.valu(f"v_cvt_pk_bf16_f32 v{d+1}, v{a+2}, v{a+3}", w=[f"v{d+1}"], r=regs("v", a + 2, 2)))
        out.append(lambda d=d, ad=ad, imm=imm: lastw.__setitem__(0, e.ds_write(f"ds_write_b64 v{ad}, v[{d}:{d+1}] offset:{imm}", r=regs("v", d, 2) + [f"v{ad}"])))
    return out
lastw = [0]
def epi_read(p):
    return [lambda h=h: rd_frag(vSt[h], aSR, p * SPAIR + h * SROW) for h in range(2)]
def epi_store(p):
    out = []
    for h in range(2):
        def f(h=h):
            I(f"s_add_u32 s31, s24, {43008*(2*p+h)}")
            e.vmem(f"buffer_store_dwordx4 v[{vSt[h]}:{vSt[h]+3}], v{vOutOff}, s[16:19], s31 offen {cfg['st_pol']}", r=regs("v", vSt[h], 4), store=True)
        out.append(f)
    return out
def interleave(mf, side_early, side_late):
    n = len(mf)
    se = list(side_early); sl = list(side_late)
    late_start = max(len(se), n - len(sl) - 1)
    for k, (t, w, f) in enumerate(mf):
        mm(t, w, f)
        if se: se.pop(0)()
        elif k >= late_start and sl: sl.pop(0)()
    for s in se + sl: s()

e.wait_vm(("w", 27)); e.wait_vm(("r", 1))
stamp("w_landed")
I("s_barrier")
for f in row_reads(0): f()
for i in range(5):
    for c in range(3):
        trread(WA[(i, c)], aA if i < 3 else aA2, (i % 3) * KROW + 384 * c)
    for c in range(3):
        t = i
        if t == 0: trread(WBm[(0, c)], aB0, 384 * c)
        elif t < 4: trread(WBm[(t, c)], aB1, (t - 1) * KROW + 384 * c)
        else: trread(WBm[(4, c)], aB4, 384 * c)
for c in range(3): trread(WBm[(5, c)], aB5, 384 * c)
for c in range(3):
    trread(WAF0[c], aF0, 384 * c); trread(WAF1[c], aF0, KROW + 384 * c); trread(WBF[c], aBF, 384 * c)
trread(WAR0, aR0, 0); trread(WAR4, aR4, 0); trread(WBR4, aBR4, 0); trread(WBR5, aBR5, 0)
e.wait_ds_all()
stamp("w_regs")
for y in range(NROW):
    early = []; late = []
    if y & 1:
        for yy in (y + 1, y + 2):
            if yy < NROW: e.wait_vm(("r", yy))
        e.wait_ds_seq(lastw[0])
        I("s_barrier")
        if y == 1:
            for yy in range(12, NROW): ld_r(yy)
            exec_all()
        p = (y - 7) // 2
        if p >= 0: early += epi_read(p); late += epi_store(p)
        early += row_reads(y + 1)
    else:
        early += row_reads(y + 1)
        p = (y - 6) // 2
        if p >= 0: early += epi_write(p)
    interleave(row_mfmas(y), early, late)
    if y in (1, 5, 9, 13): stamp(f"row{y}")
stamp("mfma_done")
p = NP - 1
for f in epi_write(p): f()
e.wait_ds_seq(lastw[0])
I("s_barrier")
for f in epi_read(p): f()
for f in epi_store(p): f()
stamp("st_issued")
if cfg["stamps"]:
    I("s_waitcnt vmcnt(0)")
    stamp("st_done")
    I("s_memrealtime s[38:39]")
    I("s_waitcnt lgkmcnt(0)")
    I("s_mov_b32 s34, 0x10000000")
    I("s_mov_b32 s35, 0x00020000")
    I("s_lshl_b32 s8, s2, 2")
    I("s_add_u32 s8, s8, s23")
    I("s_lshl_b32 s8, s8, 7")
    I(f"v_mov_b32 v1, s8")
    I("s_mov_b64 exec, 1")
    for j in range(nst[0]):
        I(f"v_mov_b32 v3, s{40+2*j}")
        I(f"buffer_store_dword v3, v1, s[32:35], 0 offen offset:{4*j}")
    I(f"v_mov_b32 v3, s36")
    I(f"buffer_store_dword v3, v1, s[32:35], 0 offen offset:120")
    I(f"v_mov_b32 v3, s38")
    I(f"buffer_store_dword v3, v1, s[32:35], 0 offen offset:124")
e.raw("L_end:")
I("s_endpgm")
e.raw('.section .rodata,"a"')
e.raw(".p2align 6")
e.raw(f".amdhsa_kernel {NAME}")
AO = (NV + 3) // 4 * 4
e.raw(f"  .amdhsa_next_free_vgpr {AO + NA}")
e.raw("  .amdhsa_next_free_sgpr 96")
e.raw(f"  .amdhsa_accum_offset {AO}")
e.raw("  .amdhsa_group_segment_fixed_size 0\n  .amdhsa_kernarg_size 40\n  .amdhsa_user_sgpr_count 2\n  .amdhsa_user_sgpr_kernarg_segment_ptr 1\n  .amdhsa_system_sgpr_workgroup_id_x 1\n.end_amdhsa_kernel")
if cfg["stamps"]: e.raw(f"; LABELS {json.dumps(labels[1:])}")
open(cfg["out"], "w").write(e.text())
print("mfma", e.nmfma, "vgpr", NV, "agpr", NA, "instrs", e.n)
```
